```python
import torch

def _softmax(x, axis=-1):
    return torch.softmax(x, dim=axis)
def _gelu(x):
    return torch.nn.functional.gelu(x, approximate="tanh")
def _silu(x):
    return torch.nn.functional.silu(x)
def _sigmoid(x):
    return torch.sigmoid(x)
def _layernorm(x, axis=-1, eps=1e-5):
    m = x.mean(dim=axis, keepdim=True)
    v = x.var(dim=axis, keepdim=True, unbiased=False)
    return (x - m) / torch.sqrt(v + eps)
def _scatter_add(tgt, idx, src, axis=0):
    return tgt.clone().index_add_(axis, idx, src)
def _segment_sum(src, seg, n):
    out = torch.zeros((n,) + src.shape[1:], dtype=src.dtype)
    return out.index_add_(0, seg, src)
def _pad(x, pw):
    flat = tuple(v for pair in reversed(pw) for v in pair)
    return torch.nn.functional.pad(x, flat)

kernel_name = 'standalone__gqa_block_cached__near_ridge'

def setup_inputs():

    _w = (lambda a: (lambda t: t.to(torch.bfloat16) if t.is_floating_point() else t)(torch.as_tensor(a)))
    B, Sq, D = 16, 224, 512
    Hq, Hkv, Sk, Dh = 32, 32, 512, 128
    assert Hq % Hkv == 0, (Hq, Hkv)
    return {
        "x": _w((lambda *s: torch.randn(*s, dtype=torch.bfloat16) * 0.8)(B, Sq, D)),
        "k_cache": _w((lambda *s: torch.randn(*s, dtype=torch.bfloat16) * 0.8)(B, Hkv, Sk, Dh)),
        "v_cache": _w((lambda *s: torch.randn(*s, dtype=torch.bfloat16) * 0.05)(B, Hkv, Sk, Dh)),
        "wq": _w((lambda *s: torch.randn(*s, dtype=torch.bfloat16) * 0.8)(D, Hq * Dh) * (D ** -0.5)),
        "wo": _w((lambda *s: torch.randn(*s, dtype=torch.bfloat16) * 0.05)(Hq * Dh, D) * ((Hq * Dh) ** -0.5)),
    }

def reference(x, k_cache, v_cache, wq, wo):
    B, Sq, D = x.shape
    Hq, Dh = 32, 128
    Hkv = k_cache.shape[1]
    rep = Hq // Hkv
    q = (lambda x, *d: x.permute(*d))((x @ wq).reshape(B, Sq, Hq, Dh), 0, 2, 1, 3)
    k = (lambda x, n, axis: torch.repeat_interleave(x, n, dim=axis))(k_cache, rep, axis=1)
    v = (lambda x, n, axis: torch.repeat_interleave(x, n, dim=axis))(v_cache, rep, axis=1)
    scores = torch.einsum("bhqd,bhkd->bhqk", q, k) * (Dh ** -0.5)
    p = _softmax(scores, axis=-1)
    o = torch.einsum("bhqk,bhkd->bhqd", p, v)
    return (lambda x, *d: x.permute(*d))(o, 0, 2, 1, 3).reshape(B, Sq, Hq * Dh) @ wo
```

```python
import re

def R(f, a, n=1):
    return [(f, a + i) for i in range(n)]

def rs(f, a, n):
    return f"{f}{a}" if n == 1 else f"{f}[{a}:{a+n-1}]"

class I:
    __slots__ = ("text", "kind", "size", "w", "r", "A", "B", "C", "ws", "tag", "note", "cnt")
    def __init__(s, text, kind, size, w=(), r=(), A=(), B=(), C=(), ws=1, tag=None, cnt=None):
        s.text, s.kind, s.size = text, kind, size
        s.w, s.r = list(w), list(r)
        s.A, s.B, s.C = list(A), list(B), list(C)
        s.ws = ws; s.tag = tag; s.cnt = cnt

def opnd(x):
    if isinstance(x, tuple):
        f, a = x[0], x[1]; n = x[2] if len(x) > 2 else 1
        return rs(f, a, n), R(f, a, n)
    if isinstance(x, str):
        if x in ("vcc", "m0", "exec", "scc"): return x, [(x, 0)]
        if x.startswith("-") and x[1] in "va":
            return x, [(x[1], int(x[2:]))]
        return x, []
    if isinstance(x, int):
        return (str(x) if -16 <= x <= 64 else hex(x & 0xffffffff)), []
    raise ValueError(x)

def is_lit(x):
    return isinstance(x, int) and not (-16 <= x <= 64)

def mfma(D, A, B, C):
    d, dr = opnd((D[0], D[1], 4)); a, ar = opnd((A[0], A[1], 4)); b, br = opnd((B[0], B[1], 4))
    if C is None: c, cr = "0", []
    else: c, cr = opnd((C[0], C[1], 4))
    return I(f"v_mfma_f32_16x16x32_bf16 {d}, {a}, {b}, {c}", "mfma", 8, w=dr, r=ar+br+cr, A=ar, B=br, C=cr)

VOP3ONLY = {"v_cvt_pk_bf16_f32", "v_max3_f32", "v_fma_f32", "v_pk_mul_f32", "v_pk_add_f32", "v_lshl_add_u32", "v_and_or_b32",
            "v_add3_u32", "v_bfe_u32", "v_lshl_or_b32", "v_mul_lo_u32", "v_accvgpr_read_b32", "v_accvgpr_write_b32", "v_xad_u32", "v_or3_b32", "v_add_lshl_u32", "v_mad_u32_u24"}
TRANS = {"v_exp_f32", "v_rcp_f32", "v_log_f32"}
def valu(op, dst, *src, mods="", extra_r=(), extra_w=()):
    d, dr = opnd(dst); st = []; sr = []
    for x in src:
        t, r = opnd(x); st.append(t); sr += r
    kind = "trans" if op in TRANS else "valu"
    if op.startswith("v_permlane"):
        return I(f"{op} {d}, {st[0]}", "perm", 4, w=dr+sr, r=dr+sr)
    if op in VOP3ONLY: size = 8
    elif any(is_lit(x) for x in src): size = 8; op = op + "_e32"
    else:
        e32ok = not mods and not any(isinstance(x, str) and x.startswith("-") for x in src)
        if len(src) == 2 and not (isinstance(src[1], tuple) and src[1][0] == "v"): e32ok = False
        if op.startswith("v_cmp") and dst != "vcc": e32ok = False
        size = "flex" if e32ok else 8
        if not e32ok: op = op + "_e64"
    return I(f"{op} {d}, " + ", ".join(st) + (" " + mods if mods else ""), kind, size, w=dr+list(extra_w), r=sr+list(extra_r))

def salu(op, dst, *src):
    d, dr = opnd(dst) if dst is not None else (None, [])
    st = []; sr = []
    for x in src:
        t, r = opnd(x); st.append(t); sr += r
    size = 8 if any(is_lit(x) for x in src) else 4
    w = list(dr)
    if op not in ("s_mov_b32", "s_mov_b64", "s_mul_i32", "s_cselect_b32"): w.append(("scc", 0))
    if op in ("s_cselect_b32", "s_addc_u32"): sr.append(("scc", 0))
    return I(f"{op} " + ", ".join(([d] if d else []) + st), "salu", size, w=w, r=sr)

def ds_read(op, dst, addr, off):
    n = {"ds_read_b128": 4, "ds_read_b64_tr_b16": 2, "ds_read_b32": 1, "ds_read_b64": 2}[op]
    d, dr = opnd((dst[0], dst[1], n)); a, ar = opnd(addr)
    assert 0 <= off < 65536
    return I(f"{op} {d}, {a} offset:{off}", "ds", 8, w=dr, r=ar)

def ds_write128(addr, src, off):
    a, ar = opnd(addr); d, dr = opnd((src[0], src[1], 4))
    assert 0 <= off < 65536
    return I(f"ds_write_b128 {a}, {d} offset:{off}", "dsw", 8, r=ar+dr)

def dma(voff, srd, soff, off, tag, flags=""):
    assert 0 <= off < 4096
    v, vr = opnd(voff); so, sor = opnd(soff)
    return I(f"buffer_load_dwordx4 {v}, s[{srd}:{srd+3}], {so} offen offset:{off}{flags} lds", "dma", 8, r=vr+sor+R("s", srd, 4)+[("m0", 0)], tag=tag)

def bload(dst, voff, srd, soff, off, tag, flags=""):
    assert 0 <= off < 4096
    d, dr = opnd((dst[0], dst[1], 4)); v, vr = opnd(voff); so, sor = opnd(soff)
    return I(f"buffer_load_dwordx4 {d}, {v}, s[{srd}:{srd+3}], {so} offen offset:{off}{flags}", "vload", 8, w=dr, r=vr+sor+R("s", srd, 4), tag=tag)

def bstore(src, n, voff, srd, soff, off, tag, flags=""):
    assert 0 <= off < 4096
    d, dr = opnd((src[0], src[1], n)); v, vr = opnd(voff); so, sor = opnd(soff)
    op = {1: "buffer_store_dword", 2: "buffer_store_dwordx2", 4: "buffer_store_dwordx4"}[n]
    return I(f"{op} {d}, {v}, s[{srd}:{srd+3}], {so} offen offset:{off}{flags}", "vstore", 8, r=dr+vr+sor+R("s", srd, 4), tag=tag, C=dr)

def wait(vm=None, lgkm=None):
    t = []
    if vm is not None: assert 0 <= vm <= 63; t.append(f"vmcnt({vm})")
    if lgkm is not None: assert 0 <= lgkm <= 15; t.append(f"lgkmcnt({lgkm})")
    return I("s_waitcnt " + " ".join(t), "wait", 4, cnt=(vm, lgkm))

def nop(n=0): return I(f"s_nop {n}", "nop", 4, ws=n+1)
def barrier(): return I("s_barrier", "bar", 4)
def raw(text, size=4, kind="other", w=(), r=()): return I(text, kind, size, w=w, r=r)
def label(name): return I(name + ":", "label", 0, ws=0)
def branch(op, target):
    r = [("vcc", 0)] if "vcc" in op else [("scc", 0)] if "scc" in op else []
    return I(f"{op} {target}", "branch", 4, r=r)

VALUK = ("valu", "trans", "perm")

def check(seq, name=""):
    errs = []
    seq = [x for x in seq if x.kind != "label"]
    lg = []
    vm = []
    for i, x in enumerate(seq):
        if x.kind == "wait":
            v, l = x.cnt
            if l is not None: lg = lg[len(lg)-l:] if l < len(lg) else lg; lg = lg if l else []
            if v is not None: vm = vm[len(vm)-v:] if v < len(vm) else vm; vm = vm if v else []
        touched = set(x.r) | set(x.w)
        for q, nm in ((lg, "lgkm"), (vm, "vm")):
            for (j, dst) in q:
                if touched & dst:
                    errs.append(f"{name}: [{i}] {x.text}  touches pending {nm} dest of [{j}] {seq[j].text}")
        if x.kind in ("ds", "dsw"): lg.append((i, set(x.w)))
        if x.kind in ("dma", "vload", "vstore"): vm.append((i, set(x.w)))
        if len(lg) > 15 and x.kind in ("ds", "dsw"): pass
        if len(vm) > 63: errs.append(f"{name}: [{i}] vmcnt overflow {len(vm)}")
        d = 0
        for j in range(i-1, max(-1, i-24), -1):
            p = seq[j]
            need = 0
            pw = set(p.w)
            if p.kind in VALUK:
                if x.kind == "mfma" and pw & set(x.r): need = max(need, 2)
                if x.kind == "perm" and pw & set(x.r): need = max(need, 2)
                if p.kind == "trans" and x.kind in ("valu", "perm") and pw & set(x.r): need = max(need, 1)
                sw = {r for r in pw if r[0] in ("s", "vcc")}
                if sw:
                    if x.kind in VALUK and sw & set(x.r): need = max(need, 2)
                    if x.kind in ("dma", "vload", "vstore") and sw & set(x.r): need = max(need, 5)
                    if x.kind == "salu" and sw & set(x.r): need = max(need, 1)
                if "readfirstlane" in x.text and pw & set(x.r): need = max(need, 1)
            if p.kind == "mfma":
                if x.kind == "mfma":
                    if pw & (set(x.A) | set(x.B)): need = max(need, 8)
                    if pw & set(x.C) and set(x.C) != pw: need = max(need, 6)
                    if pw & set(x.w) and not (set(x.C) == pw): need = max(need, 8)
                elif x.kind in VALUK + ("ds", "dsw", "vload", "vstore", "dma"):
                    if pw & (set(x.r) | set(x.w)): need = max(need, 8)
                if x.kind in VALUK and set(p.C) & set(x.w): need = max(need, 3)
            if p.kind == "salu" and ("m0", 0) in pw and x.kind == "dma": need = max(need, 1)
            if p.kind == "vstore" and len(p.C) >= 3 and set(p.C) & set(x.w): need = max(need, 2)
            if need > d:
                errs.append(f"{name}: [{i}] {x.text}  needs {need} ws after [{j}] {p.text} (has {d})")
            d += p.ws
            if d >= 12: break
    return errs

def finalize(seq, align=True):
    out = []
    off = 0
    n = len(seq)
    sizes = [None]*n
    i = 0
    idx = [k for k in range(n) if seq[k].kind != "label"]
    pos = 0
    res = []
    k = 0
    L = list(seq)
    outl = []
    while k < len(L):
        x = L[k]
        if x.kind == "label":
            if x.text.startswith(".p2align"): off = 0
            outl.append((x, 0)); k += 1; continue
        sz = x.size
        if sz == "flex":
            if off % 8 == 4: sz = 4
            else:
                m = k + 1
                while m < len(L) and L[m].kind == "label" and not L[m].text.startswith(".p2align"): m += 1
                sz = 4 if (m < len(L) and L[m].size == 4 and align) else 8
        elif sz == 8 and off % 8 == 4 and align:
            outl.append((nop(0), 4)); off += 4
        outl.append((x, sz)); off += sz; k += 1
    lines = []
    for x, sz in outl:
        t = x.text
        if x.size == "flex":
            op, rest = t.split(" ", 1)
            t = f"{op}_e{32 if sz == 4 else 64} {rest}"
        lines.append(("" if x.kind == "label" else "  ") + t)
    return "\n".join(lines), [x for x, _ in outl]
```

```python
import sys, math, struct
from asmlib import *

NAME = "standalone__gqa_block_cached__near_ridge"
def f2u(x): return struct.unpack("<I", struct.pack("<f", x))[0]
v = lambda a, n=1: ("v", a, n) if n > 1 else ("v", a)
a_ = lambda a, n=1: ("a", a, n) if n > 1 else ("a", a)
s = lambda a, n=1: ("s", a, n) if n > 1 else ("s", a)

WOT_OFF = 32*128*7168
WS_BYTES = WOT_OFF + 8*128*4096
HB = 81920

SX, SK, SV, SWQ, SWO, SWS = 20, 24, 28, 32, 36, 40
sW, sRH, sHH, sB, sH = 44, 45, 46, 47, 48
sMW, sWq0, sX0, sX3, sKV, sT0, sT1 = 49, 50, 51, 52, 53, 54, 55
sS, sNext, sDelta, sSlotM, sCnt, sBound, sO = 56, 57, 58, 59, 60, 61, 62
sC = 64
sT2, sT3 = 66, 67
QB, VF, NEGM, SB, PB, SUMT, ET = 0, 112, 144, 172, 204, 216, 220
vRdA, vRdW, vDmaK, vDmaX, vDmaV, vDmaW, vVr0, vVr1, vXr, vKr, vOst = 224, 225, 226, 227, 228, 229, 230, 231, 232, 233, 234
ONES, LS, TMP, vL = 236, 240, 248, 255
vWr = vRdW
KF = 224
XF, WF, WOF = 0, 56, 120
SBUF = [0, 1, 2, 0, 1, 2, 3]
PBUF = [0, 1, 0, 1, 0, 1, 2]

def acc(qb, db): return (qb*8 + db)*4
def Sreg(q): return SB + 8*SBUF[q]
def Preg(q): return PB + 4*PBUF[q]

class VM:
    def __init__(s): s.q = []
    def issue(s, ins): s.q.append(ins.tag); return ins
    def n_after(s, tags):
        last = max(i for i, t in enumerate(s.q) if t in tags)
        return len(s.q) - 1 - last

def weave(mf, gaps):
    out = []
    for i, m in enumerate(mf):
        out.append(m)
        g = gaps.get(i, [])
        out += g
    return out

def srd(base, plo, phi, add_lo=None, size=0):
    o = []
    if add_lo is None:
        o += [salu("s_mov_b32", s(base), s(plo)), salu("s_mov_b32", s(base+1), s(phi))]
    else:
        o += [salu("s_add_u32", s(base), s(plo), add_lo), salu("s_addc_u32", s(base+1), s(phi), 0)]
    o += [salu("s_mov_b32", s(base+2), size), salu("s_mov_b32", s(base+3), 0x00020000)]
    return o

def k1():
    vm = VM()
    P = []
    A = P.append
    A(salu("s_cmp_ge_u32", None, s(2), 256)); A(branch("s_cbranch_scc1", "K1_END"))
    A(raw("s_load_dwordx16 s[4:19], s[0:1], 0", 8, "smem", w=R("s", 4, 16)))
    A(valu("v_and_b32", v(vL), 63, v(0)))
    A(valu("v_lshrrev_b32", v(TMP), 6, v(0)))
    A(nop(0))
    A(raw(f"v_readfirstlane_b32 s{sW}, v{TMP}", 4, "valu", w=[("s", sW)], r=[("v", TMP)]))
    t0, t1, t2, t3 = TMP, TMP+1, TMP+2, TMP+3
    L = v(vL)
    A(valu("v_bfe_u32", v(t0), L, 2, 2))
    A(valu("v_sub_u32", v(t0), 0, v(t0)))
    A(valu("v_lshrrev_b32", v(t1), 4, L))
    A(valu("v_xor_b32", v(t0), v(t0), v(t1)))
    A(valu("v_and_b32", v(t0), 3, v(t0)))
    A(valu("v_lshlrev_b32", v(t0), 4, v(t0)))
    A(valu("v_and_b32", v(t2), 15, L))
    A(valu("v_lshl_add_u32", v(vRdA), v(t2), 6, v(t0)))
    A(valu("v_lshrrev_b32", v(t0), 5, L))
    A(valu("v_lshlrev_b32", v(t0), 11, v(t0)))
    A(valu("v_bfe_u32", v(t1), L, 4, 1))
    A(valu("v_lshl_add_u32", v(t0), v(t1), 8, v(t0)))
    A(valu("v_bfe_u32", v(t2), L, 2, 2))
    A(valu("v_lshl_add_u32", v(t0), v(t2), 6, v(t0)))
    A(valu("v_and_b32", v(t2), 3, L))
    A(valu("v_lshl_add_u32", v(vRdW), v(t2), 4, v(t0)))
    A(valu("v_lshl_add_u32", v(t0), v(t2), 3, v(t0)))
    A(valu("v_lshl_add_u32", v(vVr0), v(t1), 5, v(t0)))
    A(valu("v_xor_b32", v(vVr1), 32, v(vVr0)))
    vWoR, vDmaWo = TMP+4, TMP+5
    A(valu("v_lshrrev_b32", v(t3), 5, L))
    A(valu("v_lshlrev_b32", v(t3), 10, v(t3)))
    A(valu("v_sub_u32", v(vWoR), v(t0), v(t3)))
    A(valu("v_lshrrev_b32", v(t0), 4, L))
    A(valu("v_sub_u32", v(t0), 0, v(t0)))
    A(valu("v_xor_b32", v(t0), v(t0), L))
    A(valu("v_and_b32", v(t0), 3, v(t0)))
    A(valu("v_lshlrev_b32", v(t0), 4, v(t0)))
    A(valu("v_lshrrev_b32", v(t1), 2, L))
    A(valu("v_lshl_add_u32", v(vDmaK), v(t1), 8, v(t0)))
    A(valu("v_lshl_add_u32", v(vDmaX), v(t1), 10, v(t0)))
    A(valu("v_bfe_u32", v(t0), L, 2, 3))
    A(valu("v_lshrrev_b32", v(t1), 5, L))
    A(valu("v_lshlrev_b32", v(t1), 6, v(t1)))
    A(valu("v_and_b32", v(t2), 3, L))
    A(valu("v_lshl_add_u32", v(t3), v(t2), 4, v(t1)))
    A(valu("v_lshl_add_u32", v(vDmaWo), v(t0), 10, v(t3)))
    A(valu("v_lshl_add_u32", v(vDmaV), v(t0), 8, v(t3)))
    A(valu("v_bfe_u32", v(t2), L, 4, 1))
    A(valu("v_lshlrev_b32", v(t2), 5, v(t2)))
    A(valu("v_xor_b32", v(vDmaV), v(vDmaV), v(t2)))
    A(valu("v_bfe_u32", v(t0), L, 4, 1))
    A(valu("v_lshl_add_u32", v(t3), v(t0), 16, v(t3)))
    A(valu("v_bfe_u32", v(t0), L, 2, 2))
    A(valu("v_lshl_add_u32", v(vDmaW), v(t0), 13, v(t3)))
    A(valu("v_lshlrev_b32", v(vOst), 4, L))
    A(salu("s_and_b32", s(sRH), s(sW), 1)); A(salu("s_lshr_b32", s(sHH), s(sW), 1))
    A(salu("s_and_b32", s(sT0), s(2), 7)); A(salu("s_lshr_b32", s(sT1), s(2), 3))
    A(salu("s_lshr_b32", s(sB), s(sT0), 1)); A(salu("s_lshl_b32", s(sB), s(sB), 2))
    A(salu("s_lshr_b32", s(sT2), s(sT1), 3)); A(salu("s_add_u32", s(sB), s(sB), s(sT2)))
    A(salu("s_and_b32", s(sH), s(sT0), 1)); A(salu("s_lshl_b32", s(sH), s(sH), 3))
    A(salu("s_and_b32", s(sT2), s(sT1), 7)); A(salu("s_add_u32", s(sH), s(sH), s(sT2)))
    A(salu("s_lshl_b32", s(sH), s(sH), 1)); A(salu("s_add_u32", s(sH), s(sH), s(sHH)))
    A(salu("s_mul_i32", s(sMW), s(sHH), HB)); A(salu("s_lshl_b32", s(sKV), s(sRH), 12))
    A(salu("s_add_u32", s(sMW), s(sMW), s(sKV)))
    A(salu("s_lshl_b32", s(sWq0), s(sRH), 15)); A(salu("s_lshl_b32", s(sT0), s(sH), 8))
    A(salu("s_add_u32", s(sWq0), s(sWq0), s(sT0)))
    A(salu("s_mul_i32", s(sX0), s(sHH), 112*1024)); A(salu("s_lshl_b32", s(sT0), s(sRH), 16))
    A(salu("s_add_u32", s(sX0), s(sX0), s(sT0)))
    A(salu("s_cmp_eq_u32", None, s(sRH), 0)); A(salu("s_cselect_b32", s(sX3), s(sX0), 0x7f000000))
    A(salu("s_mul_i32", s(sT0), s(sRH), HB)); A(salu("s_add_u32", s(sT0), s(sT0), 8192))
    A(valu("v_add_u32", v(vXr), s(sT0), v(vRdA)))
    A(salu("s_mul_i32", s(sT0), s(sHH), HB))
    A(valu("v_add_u32", v(vWr), s(sT0), v(vRdW)))
    A(salu("s_add_u32", s(sT1), s(sT0), 3*16384))
    A(valu("v_add_u32", v(vKr), s(sT1), v(vRdA)))
    A(salu("s_add_u32", s(sT1), s(sT1), 8192))
    A(valu("v_add_u32", v(vVr0), s(sT1), v(vVr0)))
    A(valu("v_add_u32", v(vVr1), s(sT1), v(vVr1)))
    A(salu("s_add_u32", s(sT1), s(sMW), 4*16384))
    A(valu("v_add_u32", v(vWoR), s(sT1), v(vWoR)))
    A(wait(lgkm=0))
    A(salu("s_mul_i32", s(sT0), s(sB), 229376))
    P += srd(SX, 4, 5, s(sT0), 229376)
    P += srd(SWQ, 10, 11, None, 4194304)
    A(salu("s_lshl_b32", s(sT0), s(sB), 5)); A(salu("s_add_u32", s(sT0), s(sT0), s(sH))); A(salu("s_lshl_b32", s(sT0), s(sT0), 17))
    P += srd(SK, 6, 7, s(sT0), 131072)
    P += srd(SV, 8, 9, s(sT0), 131072)
    P += srd(SWO, 12, 13, None, 4194304)
    P += srd(SWS, 18, 19, None, WS_BYTES)

    def stage_items(t):
        slot = (t + 2) % 3
        it = []
        for n in range(4):
            pre = [salu("s_add_u32", "m0", s(sMW), slot*16384 + (n >> 1)*2048 + (n & 1)*896 + 0x10000 - 0x10000)]
            if n % 2 == 0: pre.append(salu("s_add_u32", s(sT0), s(sWq0), t*262144 + (n >> 1)*131072))
            it.append((pre, dma(v(vDmaW), SWQ, s(sT0), (n & 1)*128, ("st", t))))
        for i in range(4):
            pre = []
            if i == 0: pre.append(salu("s_add_u32", "m0", s(sMW), slot*16384 + 8192))
            pre.append(salu("s_add_u32", s(sT1), s(sX3 if i == 3 else sX0), t*64 + i*15360))
            it.append((pre, dma(v(vDmaX), SX, s(sT1), 1024*i, ("st", t))))
        return it
    def k_item(p, ks, static=True):
        slot = (p + 3) % 5
        pre = [salu("s_add_u32", "m0", s(sMW), slot*16384 + 960*ks), salu("s_add_u32", s(sT2), s(sKV), p*8192)]
        return (pre, dma(v(vDmaK), SK, s(sT2), 64*ks, ("kv", p)))
    def v_item(p, n):
        slot = (p + 3) % 5
        pre = [salu("s_add_u32", "m0", s(sMW), slot*16384 + 8192 + (n & 1)*896), salu("s_add_u32", s(sT2), s(sKV), p*8192)]
        return (pre, dma(v(vDmaV), SV, s(sT2), (n >> 1)*2048 + (n & 1)*128, ("kv", p)))
    def flush(items):
        o = []
        for pre, d in items:
            o += pre
            if not pre or ("m0", 0) in pre[-1].w: o.append(nop(0))
            o.append(vm.issue(d))
        return o
    P += flush(stage_items(0))
    A(salu("s_lshl_b32", s(sT2), s(2), 2)); A(salu("s_add_u32", s(sT2), s(sT2), s(sW)))
    A(salu("s_and_b32", s(sT3), s(sT2), 7)); A(salu("s_lshr_b32", s(sT2), s(sT2), 3))
    A(salu("s_lshl_b32", s(sT0), s(sT2), 15)); A(salu("s_lshl_b32", s(sT1), s(sT3), 7)); A(salu("s_add_u32", s(sT0), s(sT0), s(sT1)))
    A(salu("s_add_u32", "m0", s(sMW), 4*16384))
    for n in range(4):
        A(salu("s_add_u32", s(sT1), s(sT0), n*7168))
        A(vm.issue(dma(v(vDmaWo), SWO, s(sT1), 1024*n, "wo")))
    A(salu("s_lshl_b32", s(sT3), s(sT3), 7)); A(salu("s_add_u32", s(sT3), s(sT3), s(sT2))); A(salu("s_lshl_b32", s(sT3), s(sT3), 12))
    A(salu("s_add_u32", s(sO), s(sT3), WOT_OFF))
    P += flush(stage_items(1))
    P += flush(stage_items(2))
    for i in range(224): A(valu("v_mov_b32", v(i), 0))
    for i in range(32): A(valu("v_accvgpr_write_b32", a_(acc(6, 0) + i), 0))
    for i in range(7): A(valu("v_mov_b32", v(LS + i), 0))
    for i in range(4): A(valu("v_mov_b32", v(ONES + i), 0x3f803f80))
    c = math.log2(math.e) / math.sqrt(128.0)
    A(salu("s_mov_b32", s(sC), f2u(c))); A(salu("s_mov_b32", s(sC+1), f2u(c)))
    A(salu("s_mov_b32", s(sBound), f2u(4096.0)))
    A(salu("s_mov_b32", s(sS), 3*16384))

    def stage_reads(t):
        slot = (t + 2) % 3; bf = t & 1
        o = []
        for db in range(8):
            for tt in range(2):
                o.append(ds_read("ds_read_b64_tr_b16", a_(WF + bf*32 + db*4 + tt*2), v(vWr), slot*16384 + (db >> 1)*512 + (db & 1)*8 + tt*4096))
        for qb in range(7):
            o.append(ds_read("ds_read_b128", a_(XF + bf*28 + qb*4), v(vXr), slot*16384 + qb*1024))
        return [o[16]] + o[:16] + o[17:]
    A(wait(vm=vm.n_after({("st", 0)}))); A(barrier())
    P += stage_reads(0)
    A(wait(vm=vm.n_after({"wo"})))
    A(wait(lgkm=7))
    for cb in range(4):
        for tt in range(2):
            A(ds_read("ds_read_b64_tr_b16", a_(WOF + cb*4 + tt*2), v(vWoR), (cb >> 1)*512 + (cb & 1)*32 + tt*2048))
    A(wait(lgkm=0))
    for cb in range(4):
        A(vm.issue(bstore(a_(WOF + cb*4), 4, v(vOst), SWS, s(sO), cb*1024, "wost")))
    A(salu("s_lshl_b32", s(sO), s(sB), 1)); A(salu("s_add_u32", s(sO), s(sO), s(sRH))); A(salu("s_lshl_b32", s(sO), s(sO), 7))
    A(salu("s_lshl_b32", s(sT3), s(sH), 2)); A(salu("s_add_u32", s(sO), s(sO), s(sT3))); A(salu("s_mul_i32", s(sO), s(sO), 7168))

    def conv_ops(qb):
        o = []
        for ks in range(4):
            src = 32*qb + 8*ks; dst = QB + 16*qb + 4*ks
            for j in range(4):
                o.append(valu("v_pk_mul_f32", v(src+2*j, 2), v(src+2*j, 2), s(sC, 2)))
            for j in range(4):
                o.append(valu("v_cvt_pk_bf16_f32", v(dst+j), v(src+2*j), v(src+2*j+1)))
        return o
    def k_reads():
        return [ds_read("ds_read_b128", a_(KF + (kb*4+ks)*4), v(vKr), (kb*4+ks)*1024) for ks in range(4) for kb in range(2)]
    def v_reads(dbs):
        return [ds_read("ds_read_b64_tr_b16", v(VF + db*4 + tt*2), v(vVr1 if db & 1 else vVr0), (db >> 1)*512 + tt*4096) for db in dbs for tt in range(2)]
    Q = []
    convq = []
    for st in range(16):
        bf = st & 1
        mf = [mfma(v(acc(qb, db)), a_(WF + bf*32 + db*4), a_(XF + bf*28 + qb*4), v(acc(qb, db))) for qb in range(7) for db in range(8)]
        gaps = {i: [] for i in range(56)}
        if st < 15: gaps[0].append(wait(vm=vm.n_after({("st", st+1)})))
        gaps[1].append(barrier())
        items = stage_items(st+3) if st <= 12 else [k_item(st-11, n) for n in range(4)] + [v_item(st-11, n) for n in (0, 2, 1, 3)]
        ex = k_item(st >> 3, (st >> 1) & 3) if st % 2 == 0 else v_item(st >> 3, (st >> 1) & 3)
        items = items + [ex]
        reads = stage_reads(st+1) if st < 15 else k_reads()
        g = 2
        for pre, d in items:
            m0w = [x for x in pre if ("m0", 0) in x.w]; oth = [x for x in pre if ("m0", 0) not in x.w]
            gaps[g] += m0w
            for _ in range(2):
                if reads: gaps[g].append(reads.pop(0))
            gaps[g+1] += oth + [vm.issue(d)]
            g += 2
        while reads:
            for _ in range(2):
                if reads: gaps[g].append(reads.pop(0))
            g += 1
        if st < 15: gaps[55].append(wait(lgkm=0))
        else:
            for qb in range(7): convq += [(8*qb + 7 + 6, x) for x in conv_ops(qb)]
            for gi in range(g, 56):
                n = 0
                while convq and convq[0][0] <= gi and n < 2:
                    gaps[gi].append(convq.pop(0)[1]); n += 1
        Q += weave(mf, gaps)
    rest = [x for _, x in convq]
    n6 = len(conv_ops(6))
    T = []
    T.append(nop(7))
    T += rest[:-n6]
    T += v_reads(range(8))
    def qk(q, first):
        o = []
        for ks in range(4):
            for kb in range(2):
                D = v(Sreg(q) + 4*kb)
                C = D if ks > 0 else (None if first else v(NEGM + 4*q))
                o.append(mfma(D, a_(KF + (kb*4+ks)*4), v(QB + (q*4+ks)*4), C))
        return o
    T.append(wait(lgkm=15))
    c6 = rest[-n6:]
    gaps = {i: c6[2*i:2*i+2] for i in range(8)}
    T += weave(qk(0, True), gaps)
    T += c6[16:]

    def pv(q, first):
        return [mfma(a_(acc(q, db)), v(VF + db*4), v(Preg(q)), None if first else a_(acc(q, db))) for db in range(8)]
    def summ(q): return mfma(v(SUMT), v(ONES), v(Preg(q)), None)
    def exps(q):
        S = Sreg(q); Pq = Preg(q)
        e = [valu("v_exp_f32", v(ET + (i & 3)), v(S + i)) for i in range(8)]
        cv = [valu("v_cvt_pk_bf16_f32", v(Pq + j), v(ET + ((2*j) & 3)), v(ET + ((2*j+1) & 3))) for j in range(4)]
        return e, cv
    def crossmax(m, t):
        return [valu("v_mov_b32", v(t), v(m)), nop(1), valu("v_permlane16_swap_b32", v(m), v(t)), valu("v_max_f32", v(m), v(m), v(t)),
                valu("v_mov_b32", v(t), v(m)), nop(1), valu("v_permlane32_swap_b32", v(m), v(t)), valu("v_max_f32", v(m), v(m), v(t))]
    def max8(m, S):
        return [valu("v_max3_f32", v(m), v(S), v(S+1), v(S+2)), valu("v_max3_f32", v(m), v(m), v(S+3), v(S+4)),
                valu("v_max3_f32", v(m), v(m), v(S+5), v(S+6)), valu("v_max_f32", v(m), v(m), v(S+7))]
    def kv_loop_item(i):
        if i < 4:
            return ([salu("s_add_u32", "m0", s(sSlotM), 960*i + 0)], dma(v(vDmaK), SK, s(sKV), 64*i, "kvl"))
        n = (0, 2, 1, 3)[i-4]
        pre = [salu("s_add_u32", "m0", s(sSlotM), 8192 + (n & 1)*896)] if n < 2 else []
        return (pre, dma(v(vDmaV), SV, s(sKV), (n >> 1)*2048 + (n & 1)*128, "kvl"))

    def slot_update_salu():
        return [salu("s_add_u32", s(sNext), s(sS), 16384), salu("s_cmp_eq_u32", None, s(sNext), 81920),
                salu("s_cselect_b32", s(sNext), 0, s(sNext)), salu("s_sub_u32", s(sDelta), s(sNext), s(sS))]


    def budget_check(G, where):
        for gi, L_ in G.items():
            c = 0; sc = 0
            for x in L_:
                if x.kind == "label": continue
                if x.kind == "trans" or x.kind == "dma": c += 8
                elif x.kind in ("valu", "ds", "perm"): c += 4
                else: sc += 1
            if c > 8 or sc > 1 or (sc == 1 and [x for x in L_ if x.kind != "label"][0].kind in ("valu", "ds", "trans", "dma", "perm")):
                print(f"; budget warn {where} gap {gi}: vec {c} scal {sc}", file=sys.stderr)

    def tile0(q):
        qp = q - 1; qn = (q + 1) % 7
        mf = ([summ(qp)] if q else []) + qk(qn, q < 6) + (pv(qp, True) if q else [])
        e, cv = exps(q)
        n = len(mf)
        G = {i: [] for i in range(n)}
        S = Sreg(q); m, t = TMP, TMP+1
        ops = max8(m, S) + crossmax(m, t)
        ops += [valu("v_sub_f32", v(S+i), v(S+i), v(m)) for i in range(8)]
        ops += [e[0], e[1], valu("v_sub_f32", v(NEGM + 4*q), 0, v(m)), cv[0], e[2], e[3], valu("v_sub_f32", v(NEGM + 4*q + 1), 0, v(m)), cv[1],
                e[4], e[5], valu("v_sub_f32", v(NEGM + 4*q + 2), 0, v(m)), cv[2], e[6], e[7], valu("v_sub_f32", v(NEGM + 4*q + 3), 0, v(m)), cv[3]]
        if q == 5:
            G[0].append(wait(vm=vm.n_after({("kv", 1)}))); G[1].append(barrier())
        if q == 6: G[0].append(wait(lgkm=0))
        if q == 1: G[7].append(wait(lgkm=0))
        lastn = 6 if q == 0 else 0
        body = ops[:len(ops)-lastn]
        ng = n - 1 if q == 0 else n - 2
        per = -(-len(body) // ng)
        k = 0
        for gi in range(ng):
            G[gi] += body[k:k+per]; k += per
        G[n-1] += ops[len(ops)-lastn:]
        if q: G[9].append(valu("v_add_f32", v(LS+qp), v(LS+qp), v(SUMT)))
        extra = []
        if q == 3: extra += slot_update_salu() + [valu("v_add_u32", v(vKr), s(sDelta), v(vKr)),
                                                  valu("v_add_u32", v(vVr0), s(sDelta), v(vVr0)), valu("v_add_u32", v(vVr1), s(sDelta), v(vVr1))]
        if q == 5: extra += k_reads()
        if q == 6:
            extra += [salu("s_add_u32", s(sSlotM), s(sMW), s(sS)), salu("s_add_u32", s(sKV), s(sKV), 5*8192), salu("s_mov_b32", s(sS), s(sNext)),
                      salu("s_mov_b32", s(sCnt), 15)]
            for i in range(2):
                p_, d = kv_loop_item(i); extra += p_ + [nop(0), vm.issue(d)]
        for i, x in enumerate(extra): G[min(n-1, 9 + i)].append(x)
        if q == 0: G[n-1].append(nop(1))
        return weave(mf, G)

    def steady(q, last=False):
        qp = (q - 1) % 7; qn = (q + 1) % 7
        mf = [summ(qp)] + qk(qn, False) + pv(qp, False)
        e, cv = exps(q)
        G = {i: [] for i in range(17)}
        def front(g, x): G[g].insert(0, x)
        if q != 1: eg = [0, 1, 3, 4, 7, 8, 10, 11]; cg = [2, 5, 9, 12]; ag = 9
        else: eg = [2, 3, 5, 7, 9, 10, 12, 13]; cg = [4, 8, 11, 14]; ag = 11
        for i in range(8): G[eg[i]].append(e[i])
        for j in range(4): G[cg[j]].append(cv[j])
        G[6].append(valu("v_cmp_lt_f32", "vcc", s(sBound), v(SUMT)))
        front(7, label(f"RET_{qp}")); front(7, branch("s_cbranch_vccnz", f"RARE_{qp}"))
        G[ag].append(valu("v_add_f32", v(LS+qp), v(LS+qp), v(SUMT)))
        vr = v_reads(range(8))
        if q == 0:
            for gi, x in zip((12, 13, 13, 14, 14, 15, 15, 16, 16), vr[:9]): G[gi].append(x)
        if q == 1:
            for gi, x in zip((0, 0, 1, 1, 4, 6, 8), vr[9:]): G[gi].append(x)
            front(8, wait(lgkm=2)); front(14, wait(lgkm=0))
        if q in (2, 3, 4, 6):
            base = {2: 2, 3: 4, 4: 6, 6: 0}[q]
            for k, gi in enumerate((13, 15)):
                p_, d = kv_loop_item(base + k)
                for x in p_: front(gi-1, x)
                G[gi].append(d)
        if q == 2:
            for gi, x in zip((0, 1, 2, 3), slot_update_salu()): front(gi, x)
        if q == 3:
            G[2].append(valu("v_add_u32", v(vKr), s(sDelta), v(vKr)))
            G[5].append(valu("v_add_u32", v(vVr0), s(sDelta), v(vVr0)))
            G[6].append(valu("v_add_u32", v(vVr1), s(sDelta), v(vVr1)))
        if q == 5:
            front(0, wait(vm=24)); front(1, barrier())
            for gi, x in zip((2, 5, 6, 12, 13, 13, 14, 14), k_reads()): G[gi].append(x)
        if q == 6:
            front(0, wait(lgkm=4)); front(4, wait(lgkm=0))
            front(8, salu("s_add_u32", s(sSlotM), s(sMW), s(sS)))
            front(9, salu("s_add_u32", s(sKV), s(sKV), 8192))
            front(10, salu("s_mov_b32", s(sS), s(sNext)))
            front(15, salu("s_sub_u32", s(sCnt), s(sCnt), 1))
            front(16, salu("s_cmp_lg_u32", None, s(sCnt), 0))
        budget_check(G, f"steady{q}")
        return weave(mf, G)

    def rare(q, lab, ret):
        S = Sreg(q); m, t, sc = TMP, TMP+1, TMP+2
        o = [label(lab), nop(7)]
        o += max8(m, S) + crossmax(m, t)
        o += [valu("v_max_f32", v(m), 0, v(m)), valu("v_exp_f32", v(sc), f"-v{m}")]
        o += [valu("v_sub_f32", v(NEGM + 4*q + i), v(NEGM + 4*q + i), v(m)) for i in range(4)]
        o += [valu("v_mul_f32", v(LS+q), v(LS+q), v(sc))]
        for i in range(0, 32, 2):
            o += [valu("v_accvgpr_read_b32", v(TMP+3), a_(acc(q, 0)+i)), valu("v_accvgpr_read_b32", v(TMP+4), a_(acc(q, 0)+i+1)),
                  valu("v_mul_f32", v(TMP+3), v(TMP+3), v(sc)), valu("v_mul_f32", v(TMP+4), v(TMP+4), v(sc)),
                  valu("v_accvgpr_write_b32", a_(acc(q, 0)+i), v(TMP+3)), valu("v_accvgpr_write_b32", a_(acc(q, 0)+i+1), v(TMP+4))]
        for j in range(4):
            o += [valu("v_sub_f32", v(S+2*j), v(S+2*j), v(m)), valu("v_sub_f32", v(S+2*j+1), v(S+2*j+1), v(m)),
                  valu("v_exp_f32", v(TMP+3), v(S+2*j)), valu("v_exp_f32", v(TMP+4), v(S+2*j+1)), nop(0),
                  valu("v_cvt_pk_bf16_f32", v(Preg(q)+j), v(TMP+3), v(TMP+4))]
        o += [nop(1), summ(q), nop(7), nop(1), branch("s_branch", ret)]
        return o

    T0 = []
    for q in range(7): T0 += tile0(q)
    LOOP = []
    for q in range(7): LOOP += steady(q)
    E = [summ(6), nop(7), nop(0), valu("v_cmp_lt_f32", "vcc", s(sBound), v(SUMT)), branch("s_cbranch_vccnz", "RARE_F"), label("RET_F"),
         valu("v_add_f32", v(LS+6), v(LS+6), v(SUMT))]
    RCP = 172
    def norm_ops(qb, tb):
        o = []
        for ks in range(4):
            t = tb + 12*(ks & 1)
            for j in range(8): o.append(valu("v_accvgpr_read_b32", v(t+j), a_(acc(qb, 2*ks) + j)))
            for j in range(4): o.append(valu("v_pk_mul_f32", v(t+2*j, 2), v(t+2*j, 2), v(RCP + 2*qb, 2), mods="op_sel_hi:[1,0]"))
            for j in range(4): o.append(valu("v_cvt_pk_bf16_f32", v(t+8+j), v(t+2*j), v(t+2*j+1)))
            o.append(salu("s_add_u32", s(sT0), s(sO), ks*7168 + (4096 if qb >= 4 else 0)))
            o.append(bstore(v(t+8), 4, v(vOst), SWS, s(sT0), (qb & 3)*1024, "ost"))
        return o
    rc = [valu("v_rcp_f32", v(RCP + 2*qb), v(LS+qb)) for qb in range(7)]
    n0 = norm_ops(0, 188)
    G = {i: [] for i in range(8)}
    G[0] = rc[:2]; G[1] = rc[2:4]; G[2] = rc[4:6]; G[3] = rc[6:]
    for i in range(4, 8): G[i] = n0[2*(i-4):2*(i-4)+2]
    E += weave(pv(6, False), G)
    E += n0[8:]
    for qb in range(1, 7): E += norm_ops(qb, 188)
    RARES = []
    for q in range(7): RARES += rare(q, f"RARE_{q}", f"RET_{q}")
    RARES += rare(6, "RARE_F", "RET_F")

    errs = check(P + Q + T + T0 + LOOP + LOOP + E, "K1")
    for q in range(7):
        errs += check(rare(q, "a", "b"), f"rare{q}")
    seq = P + Q + T + T0 + [label(".p2align 3"), label("K1_LOOP")] + LOOP + [branch("s_cbranch_scc1", "K1_LOOP")] + E + \
          [raw("s_endpgm")] + RARES + [label("K1_END")]
    return seq, errs

def k2():
    SO, SWT, SOUT = 20, 24, 28
    sW, sMT, sNT, sA, sBo, sT0, sT1, sCnt = 32, 33, 34, 35, 36, 37, 38, 39
    vL, vOff, vOff4, vT = 0, 1, 2, 3
    ST = 3; FR = 4; NL = 11
    P = []; A = P.append
    A(salu("s_cmp_ge_u32", None, s(2), 256)); A(branch("s_cbranch_scc1", "K2_END"))
    A(raw("s_load_dwordx2 s[4:5], s[0:1], 40", 8, "smem", w=R("s", 4, 2)))
    A(raw("s_load_dwordx2 s[6:7], s[0:1], 56", 8, "smem", w=R("s", 6, 2)))
    A(valu("v_lshrrev_b32", v(vT), 6, v(0)))
    A(valu("v_and_b32", v(vL), 63, v(0)))
    A(raw(f"v_readfirstlane_b32 s{sW}, v{vT}", 4, "valu", w=[("s", sW)], r=[("v", vT)]))
    A(valu("v_lshlrev_b32", v(vOff), 4, v(vL)))
    A(valu("v_add_u32", v(vOff4), 4096, v(vOff)))
    A(salu("s_and_b32", s(sT0), s(2), 7)); A(salu("s_lshr_b32", s(sT1), s(2), 3))
    A(salu("s_and_b32", s(sNT), s(sT1), 7)); A(salu("s_lshr_b32", s(sMT), s(sT1), 3))
    A(salu("s_lshl_b32", s(sT0), s(sT0), 2)); A(salu("s_add_u32", s(sMT), s(sMT), s(sT0)))
    A(salu("s_lshl_b32", s(sT0), s(sW), 5))
    A(salu("s_lshl_b32", s(sA), s(sMT), 7)); A(salu("s_add_u32", s(sA), s(sA), s(sT0))); A(salu("s_mul_i32", s(sA), s(sA), 7168))
    A(salu("s_lshl_b32", s(sBo), s(sNT), 7)); A(salu("s_add_u32", s(sBo), s(sBo), s(sT0))); A(salu("s_lshl_b32", s(sBo), s(sBo), 12))
    A(wait(lgkm=0))
    P += srd(SO, 6, 7, None, WOT_OFF)
    P += srd(SWT, 6, 7, WOT_OFF, 8*128*4096)
    P += srd(SOUT, 4, 5, None, 16*224*512*2)
    def fr(st, i): return FR + (st*NL + i)*4
    def loads(st):
        o = []
        for cb in range(4): o.append(bload(v(fr(st, 7+cb)), v(vOff), SWT, s(sBo), cb*1024, "l"))
        for qb in range(7): o.append(bload(v(fr(st, qb)), v(vOff4 if qb >= 4 else vOff), SO, s(sA), (qb & 3)*1024, "l"))
        return o
    adv = lambda: [salu("s_add_u32", s(sA), s(sA), 7168), salu("s_add_u32", s(sBo), s(sBo), 4096)]
    for st in range(ST-1): P += loads(st) + adv()
    for i in range(112): A(valu("v_accvgpr_write_b32", a_(i), 0))
    A(salu("s_mov_b32", s(sCnt), 10))
    def step(st, ld):
        mf = [mfma(a_((qb*4+cb)*4), v(fr(st, 7+cb)), v(fr(st, qb)), a_((qb*4+cb)*4)) for qb in range(7) for cb in range(4)]
        G = {i: [] for i in range(28)}
        if ld:
            for i, x in enumerate(loads((st + ST - 1) % ST)): G[2*i].append(x)
            ad = adv(); G[23].append(ad[0]); G[24].append(ad[1])
        return mf, G
    LOOP = []
    for st in range(ST):
        mf, G = step(st, True)
        LOOP.append(wait(vm=(ST-2)*NL))
        if st == ST-1:
            G[25].append(salu("s_sub_u32", s(sCnt), s(sCnt), 1)); G[26].append(salu("s_cmp_lg_u32", None, s(sCnt), 0))
        LOOP += weave(mf, G)
    E = []
    for k, st in enumerate((0, 1)):
        mf, G = step(st, False)
        E.append(wait(vm=NL if k == 0 else 0))
        E += weave(mf, G)
    E.append(nop(7))
    vWA = [4, 5, 6, 7]
    for cb in range(4):
        E += [salu("s_sub_u32", s(sT0), s(sW), cb + 1), salu("s_and_b32", s(sT0), s(sT0), 3), salu("s_mul_i32", s(sT0), s(sT0), 7168),
              salu("s_add_u32", s(sT0), s(sT0), cb*4*7168), valu("v_add_u32", v(vWA[cb]), s(sT0), v(vOff))]
    for cb in range(4):
        for qb in range(7): E.append(ds_write128(v(vWA[cb]), a_((qb*4+cb)*4), qb*1024))
        E.append(wait(lgkm=0))
    E += [barrier()]
    E += [salu("s_mul_i32", s(sT0), s(sW), 4*7168), valu("v_add_u32", v(8), s(sT0), v(vOff))]
    RB = 16
    for sl in range(4):
        for qb in range(7): E.append(ds_read("ds_read_b128", v(RB + (sl*7+qb)*4), v(8), sl*7168 + qb*1024))
        if sl % 2 == 1: E.append(wait(lgkm=0))
    E += [valu("v_and_b32", v(9), 15, v(vL)), valu("v_lshlrev_b32", v(9), 10, v(9)), valu("v_lshrrev_b32", v(10), 4, v(vL)),
          valu("v_lshl_add_u32", v(9), v(10), 3, v(9)),
          salu("s_mul_i32", s(sT0), s(sMT), 112*1024), salu("s_lshl_b32", s(sT1), s(sNT), 7), salu("s_add_u32", s(sT0), s(sT0), s(sT1)),
          salu("s_lshl_b32", s(sT1), s(sW), 5), salu("s_add_u32", s(sT0), s(sT0), s(sT1))]
    for qb in range(7):
        r = [RB + (sl*7+qb)*4 for sl in range(4)]
        for h in range(2):
            E.append(valu("v_pk_add_f32", v(r[0]+2*h, 2), v(r[0]+2*h, 2), v(r[1]+2*h, 2)))
            E.append(valu("v_pk_add_f32", v(r[2]+2*h, 2), v(r[2]+2*h, 2), v(r[3]+2*h, 2)))
            E.append(valu("v_pk_add_f32", v(r[0]+2*h, 2), v(r[0]+2*h, 2), v(r[2]+2*h, 2)))
        E.append(valu("v_cvt_pk_bf16_f32", v(r[1]), v(r[0]), v(r[0]+1)))
        E.append(valu("v_cvt_pk_bf16_f32", v(r[1]+1), v(r[0]+2), v(r[0]+3)))
        E.append(bstore(v(r[1]), 2, v(9), SOUT, s(sT0), 0, "o"))
        E.append(salu("s_add_u32", s(sT0), s(sT0), 16384))
    errs = check(P + LOOP + LOOP + E, "K2")
    seq = P + [label(".p2align 3"), label("K2_LOOP")] + LOOP + [branch("s_cbranch_scc1", "K2_LOOP")] + E + [label("K2_END")]
    return seq, errs, FR + ST*NL*4

def kd(name, nv, acco):
    return f""".amdhsa_kernel {name}
  .amdhsa_next_free_vgpr {nv}
  .amdhsa_next_free_sgpr 102
  .amdhsa_accum_offset {acco}
  .amdhsa_group_segment_fixed_size 0
  .amdhsa_kernarg_size 64
  .amdhsa_user_sgpr_count 2
  .amdhsa_user_sgpr_kernarg_segment_ptr 1
  .amdhsa_system_sgpr_workgroup_id_x 1
.end_amdhsa_kernel
"""

def main(path):
    s1, e1 = k1(); s2, e2, nv2 = k2()
    for e in e1 + e2: print("HAZARD", e, file=sys.stderr)
    for x in s1 + s2:
        if x.kind == "label" and x.text.startswith(".p2align"): x.text = ".p2align 3"
    t1, f1 = finalize(s1); t2, f2 = finalize(s2)
    acc2 = (nv2 + 3)//4*4
    ref = open(f"cdna_kernels/{NAME}.s.ref").read().split("\n")
    hdr = [l for l in ref if l.startswith(";") and "@launch" not in l and "Override" not in l and "grid=ceil" not in l]
    out = "\n".join(hdr) + f"""
; @launch kernel={NAME}_kernel grid=(256,1,1) block=(256,1,1) lds=163840
; @launch kernel=gqa_oproj_kernel grid=(256,1,1) block=(256,1,1) lds=114688
.amdgcn_target "amdgcn-amd-amdhsa--gfx950"
.text
.globl {NAME}_kernel
.p2align 8
.type {NAME}_kernel,@function
{NAME}_kernel:
{t1}
  s_endpgm
.globl gqa_oproj_kernel
.p2align 8
.type gqa_oproj_kernel,@function
gqa_oproj_kernel:
{t2}
  s_endpgm
.section .rodata,"a"
.p2align 6
{kd(NAME + "_kernel", 512, 256)}.p2align 6
{kd("gqa_oproj_kernel", acc2 + 112, acc2)}"""
    open(path, "w").write(out)
    print(f"wrote {path}: K1 {len(f1)} instrs, K2 {len(f2)} instrs, hazards {len(e1)+len(e2)}", file=sys.stderr)

if __name__ == "__main__":
    main(sys.argv[1] if len(sys.argv) > 1 else f"cdna_kernels/{NAME}.s")
```
